```python
import torch

def _softmax(x, axis=-1):
    return torch.softmax(x, dim=axis)
def _gelu(x):
    return torch.nn.functional.gelu(x, approximate="tanh")
def _silu(x):
    return torch.nn.functional.silu(x)
def _sigmoid(x):
    return torch.sigmoid(x)
def _layernorm(x, axis=-1, eps=1e-5):
    m = x.mean(dim=axis, keepdim=True)
    v = x.var(dim=axis, keepdim=True, unbiased=False)
    return (x - m) / torch.sqrt(v + eps)
def _scatter_add(tgt, idx, src, axis=0):
    return tgt.clone().index_add_(axis, idx, src)
def _segment_sum(src, seg, n):
    out = torch.zeros((n,) + src.shape[1:], dtype=src.dtype)
    return out.index_add_(0, seg, src)
def _pad(x, pw):
    flat = tuple(v for pair in reversed(pw) for v in pair)
    return torch.nn.functional.pad(x, flat)

kernel_name = 'standalone__glu_gated_reglu__prompt'

def setup_inputs():

    _w = (lambda a: (lambda t: t.to(torch.bfloat16) if t.is_floating_point() else t)(torch.as_tensor(a)))
    B, S, D, F = 1, 2048, 512, 1792
    return {
        "x": _w((lambda *s: torch.randn(*s, dtype=torch.bfloat16) * 0.05)(B, S, D)),
        "W_gate": _w((lambda *s: torch.randn(*s, dtype=torch.bfloat16) * 0.05)(D, F) * (2.0 / D) ** 0.5),
        "W_up": _w((lambda *s: torch.randn(*s, dtype=torch.bfloat16) * 0.05)(D, F) * (2.0 / D) ** 0.5),
        "W_down": _w((lambda *s: torch.randn(*s, dtype=torch.bfloat16) * 0.05)(F, D) * (1.0 / F) ** 0.5),
    }

def reference(x, W_gate, W_up, W_down):
    gate = torch.einsum("bsd,df->bsf", x, W_gate)
    up = torch.einsum("bsd,df->bsf", x, W_up)
    gate = gate * (lambda x, dt: x.to(dt))(gate > 0, gate.dtype)
    h = gate * up
    return torch.einsum("bsf,fd->bsd", h, W_down)
```

```python
import sys

M, D, F = 2048, 512, 1792
NAME = "standalone__glu_gated_reglu__prompt_kernel"


class Asm:
    def __init__(self):
        self.l = []
        self.vm = []

    def __call__(self, s):
        self.l.append("    " + s)

    def label(self, s):
        self.l.append(s + ":")

    def c(self, s):
        self.l.append("    ; " + s)

    def vmem(self, s, tag):
        self(s)
        self.vm.append(tag)

    def vm_need(self, pred):
        last = -1
        for i, t in enumerate(self.vm):
            if pred(t):
                last = i
        if last < 0:
            return None
        n = len(self.vm) - 1 - last
        self.vm = self.vm[last + 1:]
        return min(n, 63)

    def wait_vm(self, pred):
        n = self.vm_need(pred)
        if n is not None:
            self(f"s_waitcnt vmcnt({n})")

    def text(self):
        return "\n".join(self.l) + "\n"


def srd(a, d, lo, hi, nbytes):
    a(f"s_mov_b32 s{d}, s{lo}")
    a(f"s_mov_b32 s{d+1}, s{hi}")
    a(f"s_mov_b32 s{d+2}, {nbytes}")
    a(f"s_mov_b32 s{d+3}, 0x00020000")


H_BYTES = 64 * 112 * 1024


def gen_p1(a):
    SLOT = 28928
    UPOFF = 14464
    NSLOT = 5
    a.label(NAME)
    a("s_cmp_ge_u32 s2, 256")
    a("s_cbranch_scc1 L_p1_end")
    a("s_load_dwordx8 s[4:11], s[0:1], 0")
    a("s_load_dwordx2 s[16:17], s[0:1], 48")
    a("v_lshrrev_b32 v1, 6, v0")
    a("v_and_b32 v2, 63, v0")
    a("v_readfirstlane_b32 s3, v1")
    a("s_and_b32 s32, s2, 7")
    a("s_lshr_b32 s33, s2, 3")
    a("s_and_b32 s34, s32, 1")
    a("s_lshl_b32 s34, s34, 3")
    a("s_and_b32 s35, s33, 7")
    a("s_add_u32 s34, s34, s35")
    a("s_lshr_b32 s35, s32, 1")
    a("s_lshl_b32 s35, s35, 2")
    a("s_lshr_b32 s36, s33, 3")
    a("s_add_u32 s35, s35, s36")
    a("s_lshl_b32 s36, s34, 2")
    a("s_add_u32 s36, s36, s3")
    a("s_lshl_b32 s37, s36, 15")
    a("v_and_b32 v3, 31, v2")
    a("v_lshlrev_b32 v3, 10, v3")
    a("v_lshrrev_b32 v4, 5, v2")
    a("v_lshlrev_b32 v4, 4, v4")
    a("v_add3_u32 v3, v3, v4, s37")
    a("s_and_b32 s38, s3, 1")
    a("s_mul_i32 s38, s38, 448")
    a("s_mul_i32 s39, s35, 224")
    a("s_movk_i32 s40, 3584")
    for i in range(7):
        a(f"s_add_u32 s41, s38, {i*64}")
        a("v_add_u32 v4, s41, v2")
        a("v_mul_u32_u24 v5, 4682, v4")
        a("v_lshrrev_b32 v5, 16, v5")
        a("v_mul_u32_u24 v6, 14, v5")
        a("v_sub_u32 v6, v4, v6")
        a("v_lshlrev_b32 v6, 4, v6")
        a("v_mul_u32_u24 v5, s40, v5")
        a(f"v_add3_u32 v{8+i}, v5, v6, s39")
    a("v_lshrrev_b32 v4, 4, v2")
    a("v_and_b32 v5, 1, v4")
    a(f"v_mul_u32_u24 v5, {UPOFF}, v5")
    a("v_lshrrev_b32 v4, 1, v4")
    a("v_lshlrev_b32 v4, 3, v4")
    a("v_bfe_u32 v6, v2, 2, 2")
    a("v_add_u32 v4, v4, v6")
    a("v_mul_u32_u24 v4, 224, v4")
    a("v_and_b32 v6, 3, v2")
    a("v_lshlrev_b32 v6, 3, v6")
    a("v_add3_u32 v16, v4, v5, v6")
    for s in range(1, NSLOT):
        a(f"v_add_u32 v{16+s}, {s*SLOT}, v16")
    a("v_lshlrev_b32 v21, 4, v2")
    a("s_lshr_b32 s42, s3, 1")
    a(f"s_mul_i32 s42, s42, {UPOFF}")
    a("s_and_b32 s43, s3, 1")
    a("s_mul_i32 s43, s43, 7168")
    a("s_add_u32 s42, s42, s43")
    a("s_mul_i32 s44, s36, 112")
    a("s_mul_i32 s45, s35, 7")
    a("s_add_u32 s44, s44, s45")
    a("s_lshl_b32 s44, s44, 10")
    a("s_add_u32 s45, s44, 4096")
    a("s_waitcnt lgkmcnt(0)")
    srd(a, 20, 4, 5, M * D * 2)
    a("s_cmp_lt_u32 s3, 2")
    a("s_cselect_b32 s24, s6, s8")
    a("s_cselect_b32 s25, s7, s9")
    a(f"s_mov_b32 s26, {D*F*2}")
    a("s_mov_b32 s27, 0x00020000")
    srd(a, 28, 16, 17, H_BYTES)

    def dma(c):
        slot = c % NSLOT
        a(f"s_mov_b32 s46, {c*64*3584}")
        for i in range(7):
            a(f"s_add_u32 m0, s42, {slot*SLOT + i*1024}")
            a("s_nop 0")
            a.vmem(f"buffer_load_dwordx4 v{8+i}, s[24:27], s46 offen lds", ("w", c))

    def xload(S):
        a.vmem(f"buffer_load_dwordx4 a[{4*S}:{4*S+3}], v3, s[20:23], 0 offen offset:{32*S}", ("x", S // 4))

    for c in range(NSLOT):
        dma(c)
        for S in range(4 * c, 4 * c + 4):
            xload(S)
    for S in range(20, 32):
        xload(S)

    ACC = 128
    WF = 64

    def wf(S, t):
        b = WF + (S % 2) * 28 + t * 4
        return b

    def reads(S, t):
        c, s = S // 4, S % 4
        vb = 16 + (c % NSLOT)
        b = wf(S, t)
        for j in range(2):
            off = (16 * s + 4 * j) * 224 + 32 * t
            a(f"ds_read_b64_tr_b16 v[{b+2*j}:{b+2*j+1}], v{vb} offset:{off}")

    def top(c):
        a.wait_vm(lambda t: t[1] <= c and t[0] in ("w", "x"))
        a("s_barrier")
        if c >= 2 and c + 3 <= 7:
            dma(c + 3)

    top(0)
    for t in range(7):
        reads(0, t)
    for S in range(32):
        if (S + 1) % 4 == 0 and S + 1 < 32:
            top((S + 1) // 4)
        for t in range(7):
            if S < 31:
                a("s_waitcnt lgkmcnt(12)")
            else:
                a(f"s_waitcnt lgkmcnt({12-2*t})")
            b = wf(S, t)
            acc = ACC + 16 * t
            src = "0" if S == 0 else f"v[{acc}:{acc+15}]"
            a(f"v_mfma_f32_32x32x16_bf16 v[{acc}:{acc+15}], v[{b}:{b+3}], a[{4*S}:{4*S+3}], {src}")
            if S < 31:
                reads(S + 1, t)
    a("s_nop 7")
    for t in range(7):
        acc = ACC + 16 * t
        o = 24 + (t % 2) * 4
        if t == 6:
            a("s_nop 7")
        for r in range(8):
            a(f"v_max_f32 v{acc+r}, 0, v{acc+r}")
        for r in range(8):
            a(f"v_mul_f32 v{acc+r}, v{acc+r}, v{acc+8+r}")
        for q in range(4):
            a(f"v_cvt_pk_bf16_f32 v{o+q}, v{acc+2*q}, v{acc+2*q+1}")
        so = "s44" if t < 4 else "s45"
        a(f"buffer_store_dwordx4 v[{o}:{o+3}], v21, s[28:31], {so} offen offset:{(t%4)*1024}")
    a.label("L_p1_end")
    a("s_endpgm")
    return NSLOT * SLOT


def gen_p2(a):
    a.vm = []
    RING = 16
    AHEAD = 15
    WREG = 32768
    a.label("glu_p2_kernel")
    a("s_cmp_ge_u32 s2, 256")
    a("s_cbranch_scc1 L_p2_end")
    a("s_load_dwordx4 s[8:11], s[0:1], 24")
    a("s_load_dwordx2 s[16:17], s[0:1], 48")
    a("v_lshrrev_b32 v1, 6, v0")
    a("v_and_b32 v2, 63, v0")
    a("v_readfirstlane_b32 s3, v1")
    a("s_and_b32 s32, s2, 7")
    a("s_lshr_b32 s33, s2, 3")
    a("s_lshl_b32 s34, s32, 2")
    a("s_and_b32 s35, s33, 3")
    a("s_add_u32 s34, s34, s35")
    a("s_lshr_b32 s35, s33, 2")
    a("s_mul_i32 s36, s34, 224")
    a("s_mul_i32 s37, s3, 28")
    a("s_add_u32 s36, s36, s37")
    a("s_lshl_b32 s36, s36, 10")
    a("v_lshlrev_b32 v3, 4, v2")
    a("v_add_u32 v3, s36, v3")
    a(f"v_add_u32 v4, {112*1024}, v3")
    a("v_lshrrev_b32 v5, 3, v2")
    a("v_and_b32 v6, 7, v2")
    a("v_bfe_u32 v7, v2, 4, 1")
    a("v_lshlrev_b32 v7, 2, v7")
    a("v_xor_b32 v6, v6, v7")
    a("v_lshlrev_b32 v6, 4, v6")
    a("v_lshlrev_b32 v5, 10, v5")
    a("s_mul_i32 s37, s3, 448*1024")
    a("s_lshl_b32 s38, s35, 7")
    a("s_add_u32 s37, s37, s38")
    a("v_add3_u32 v8, v5, v6, s37")
    a(f"v_add_u32 v9, {8192-1024}, v8")
    a("v_lshrrev_b32 v5, 5, v2")
    a("v_lshlrev_b32 v5, 2, v5")
    a("v_bfe_u32 v6, v2, 2, 2")
    a("v_add_u32 v5, v5, v6")
    a("v_lshlrev_b32 v5, 7, v5")
    a("v_bfe_u32 v6, v2, 3, 1")
    a("v_lshlrev_b32 v6, 6, v6")
    a("v_bfe_u32 v7, v2, 4, 1")
    a("v_lshlrev_b32 v7, 5, v7")
    a("v_add3_u32 v5, v5, v6, v7")
    a("v_and_b32 v6, 3, v2")
    a("v_lshlrev_b32 v6, 3, v6")
    a("s_lshl_b32 s39, s3, 15")
    a("v_add3_u32 v10, v5, v6, s39")
    a("v_xor_b32 v11, 64, v10")
    a("s_waitcnt lgkmcnt(0)")
    srd(a, 20, 8, 9, F * D * 2)
    srd(a, 24, 10, 11, M * D * 2)
    srd(a, 28, 16, 17, H_BYTES)

    def hreg(ks, i):
        return (ks % RING) * 8 + i * 4

    def loads(ks):
        a(f"s_add_u32 m0, s39, {(ks % RING)*2048}")
        a(f"s_mov_b32 s46, {ks*16*1024}")
        a.vmem("buffer_load_dwordx4 v8, s[20:23], s46 offen lds", ("w", ks))
        a.vmem("buffer_load_dwordx4 v9, s[20:23], s46 offen offset:1024 lds", ("w", ks))
        a(f"s_mov_b32 s47, {ks*1024}")
        for i in range(2):
            r = hreg(ks, i)
            a.vmem(f"buffer_load_dwordx4 a[{r}:{r+3}], v{3+i}, s[28:31], s47 offen", ("h", ks))

    ACC = 64
    WF = 32

    def wf(ks, j):
        return WF + (ks % 2) * 8 + j * 4

    def reads(ks):
        for j in range(2):
            b = wf(ks, j)
            for e in range(2):
                a(f"ds_read_b64_tr_b16 v[{b+2*e}:{b+2*e+1}], v{10+j} offset:{(ks%RING)*2048 + e*1024}")

    for ks in range(AHEAD):
        loads(ks)
    a.wait_vm(lambda t: t[1] <= 0)
    reads(0)
    for ks in range(28):
        if ks + 1 < 28:
            a.wait_vm(lambda t: t[1] <= ks + 1)
            reads(ks + 1)
            a("s_waitcnt lgkmcnt(4)")
        else:
            a("s_waitcnt lgkmcnt(0)")
        for j in range(2):
            for i in range(2):
                acc = ACC + (j * 2 + i) * 16
                b = wf(ks, j)
                r = hreg(ks, i)
                src = "0" if ks == 0 else f"v[{acc}:{acc+15}]"
                a(f"v_mfma_f32_32x32x16_bf16 v[{acc}:{acc+15}], v[{b}:{b+3}], a[{r}:{r+3}], {src}")
        if ks + AHEAD < 28:
            loads(ks + AHEAD)
    PITCH = 272
    a("v_and_b32 v5, 31, v2")
    a(f"v_mul_u32_u24 v5, {PITCH}, v5")
    a("v_lshrrev_b32 v6, 5, v2")
    a("v_lshlrev_b32 v6, 4, v6")
    a("v_add3_u32 v12, v5, v6, s39")
    a("v_lshrrev_b32 v5, 3, v0")
    a(f"v_mul_u32_u24 v6, {PITCH}, v5")
    a("v_and_b32 v7, 7, v0")
    a("v_lshlrev_b32 v13, 5, v7")
    a("v_add_u32 v13, v13, v6")
    a("s_lshl_b32 s40, s34, 16")
    a("s_add_u32 s40, s40, s38")
    a("v_lshlrev_b32 v5, 10, v5")
    a("v_lshlrev_b32 v7, 4, v7")
    a("v_add3_u32 v14, v5, v7, s40")
    a("s_nop 7")
    a("s_nop 3")
    for j in range(2):
        for i in range(2):
            acc = ACC + (j * 2 + i) * 16
            for q in range(4):
                off = 32 * i * PITCH + (32 * j + 8 * q) * 4
                a(f"ds_write_b128 v12, v[{acc+4*q}:{acc+4*q+3}] offset:{off}")
    a("s_waitcnt lgkmcnt(0)")
    a("s_barrier")
    a(f"v_add_u32 v15, {2*WREG}, v13")
    for half in range(2):
        for w in range(4):
            base = 13 if w < 2 else 15
            off = (w % 2) * WREG + half * 32 * PITCH
            d = ACC + half * 32 + w * 8
            a(f"ds_read_b128 v[{d}:{d+3}], v{base} offset:{off}")
            a(f"ds_read_b128 v[{d+4}:{d+7}], v{base} offset:{off+16}")
    for half in range(2):
        a(f"s_waitcnt lgkmcnt({8 if half == 0 else 0})")
        d = ACC + half * 32
        for e in range(8):
            a(f"v_add_f32 v{d+e}, v{d+e}, v{d+8+e}")
            a(f"v_add_f32 v{d+16+e}, v{d+16+e}, v{d+24+e}")
        for e in range(8):
            a(f"v_add_f32 v{d+e}, v{d+e}, v{d+16+e}")
        o = 16 + half * 4
        for q in range(4):
            a(f"v_cvt_pk_bf16_f32 v{o+q}, v{d+2*q}, v{d+2*q+1}")
        a(f"s_mov_b32 s41, {half*32*1024}")
        a(f"buffer_store_dwordx4 v[{o}:{o+3}], v14, s[24:27], s41 offen")
    a.label("L_p2_end")
    a("s_endpgm")
    return 4 * WREG


def kd(name, nv, acc):
    return f""".amdhsa_kernel {name}
  .amdhsa_next_free_vgpr {nv}
  .amdhsa_next_free_sgpr 64
  .amdhsa_accum_offset {acc}
  .amdhsa_group_segment_fixed_size 0
  .amdhsa_kernarg_size 56
  .amdhsa_user_sgpr_count 2
  .amdhsa_user_sgpr_kernarg_segment_ptr 1
  .amdhsa_system_sgpr_workgroup_id_x 1
.end_amdhsa_kernel
"""


def main(out):
    a1 = Asm()
    lds1 = gen_p1(a1)
    a2 = Asm()
    lds2 = gen_p2(a2)
    s = f"""; ReGLU FFN: out = (relu(x Wg) * (x Wu)) Wd   (generated by gen/gen_v1.py)
; @launch kernel={NAME} grid=(256,1,1) block=(256,1,1) lds={lds1}
; @launch kernel=glu_p2_kernel grid=(256,1,1) block=(256,1,1) lds={lds2}
.amdgcn_target "amdgcn-amd-amdhsa--gfx950"
.text
.globl {NAME}
.p2align 8
.type {NAME},@function
{a1.text()}
.globl glu_p2_kernel
.p2align 8
.type glu_p2_kernel,@function
{a2.text()}
.section .rodata,"a"
.p2align 6
{kd(NAME, 256+128, 256)}
.p2align 6
{kd("glu_p2_kernel", 128+128, 128)}
"""
    open(out, "w").write(s)


if __name__ == "__main__":
    main(sys.argv[1] if len(sys.argv) > 1 else "standalone__glu_gated_reglu__prompt.s")
```

```python
import sys

M, D, F = 2048, 512, 1792
NAME = "standalone__glu_gated_reglu__prompt_kernel"


class Asm:
    def __init__(self):
        self.l = []
        self.vm = []

    def __call__(self, s):
        self.l.append("    " + s)

    def label(self, s):
        self.l.append(s + ":")

    def c(self, s):
        self.l.append("    ; " + s)

    def vmem(self, s, tag):
        self(s)
        self.vm.append(tag)

    def vm_need(self, pred):
        last = -1
        for i, t in enumerate(self.vm):
            if pred(t):
                last = i
        if last < 0:
            return None
        n = len(self.vm) - 1 - last
        self.vm = self.vm[last + 1:]
        return min(n, 63)

    def wait_vm(self, pred):
        n = self.vm_need(pred)
        if n is not None:
            self(f"s_waitcnt vmcnt({n})")

    nst = 0
    stamps = False
    def stamp(self):
        if not self.stamps: return
        r = 64 + 2*self.nst
        assert r <= 100
        self(f"s_memrealtime s[{r}:{r+1}]")
        self.nst += 1

    def stamp_flush(self, off, wsreg, nmax=16):
        if not self.stamps: return
        self("s_waitcnt vmcnt(0) lgkmcnt(0)")
        self.stamp()
        self("s_waitcnt lgkmcnt(0)")
        self(f"s_add_u32 s48, s{wsreg}, {off}")
        self(f"s_addc_u32 s49, s{wsreg+1}, 0")
        self(f"s_mov_b32 s50, {1<<20}")
        self("s_mov_b32 s51, 0x00020000")
        self(f"s_mul_i32 s52, s2, {nmax*8*4}")
        self(f"s_mul_i32 s53, s3, {nmax*8}")
        self("s_add_u32 s52, s52, s53")
        self("v_mov_b32 v1, 0")
        self("s_mov_b64 exec, 1")
        for i in range(self.nst):
            r = 64+2*i
            self(f"v_mov_b32 v2, s{r}")
            self(f"v_mov_b32 v3, s{r+1}")
            self(f"buffer_store_dwordx2 v[2:3], v1, s[48:51], s52 offen offset:{8*i}")
            self("s_nop 1")

    def text(self):
        return "\n".join(self.l) + "\n"


def srd(a, d, lo, hi, nbytes):
    a(f"s_mov_b32 s{d}, s{lo}")
    a(f"s_mov_b32 s{d+1}, s{hi}")
    a(f"s_mov_b32 s{d+2}, {nbytes}")
    a(f"s_mov_b32 s{d+3}, 0x00020000")


H_BYTES = 64 * 112 * 1024


def gen_p1(a):
    SLOT = 28928
    UPOFF = 14464
    NSLOT = 5
    a.label(NAME)
    a("s_cmp_ge_u32 s2, 256")
    a("s_cbranch_scc1 L_p1_end")
    a.stamp()
    a("s_load_dwordx8 s[4:11], s[0:1], 0")
    a("s_load_dwordx2 s[16:17], s[0:1], 48")
    a("v_lshrrev_b32 v1, 6, v0")
    a("v_and_b32 v2, 63, v0")
    a("v_readfirstlane_b32 s3, v1")
    a("s_and_b32 s32, s2, 7")
    a("s_lshr_b32 s33, s2, 3")
    a("s_and_b32 s34, s32, 1")
    a("s_lshl_b32 s34, s34, 3")
    a("s_and_b32 s35, s33, 7")
    a("s_add_u32 s34, s34, s35")
    a("s_lshr_b32 s35, s32, 1")
    a("s_lshl_b32 s35, s35, 2")
    a("s_lshr_b32 s36, s33, 3")
    a("s_add_u32 s35, s35, s36")
    a("s_lshl_b32 s36, s34, 2")
    a("s_add_u32 s36, s36, s3")
    a("s_lshl_b32 s37, s36, 15")
    a("v_and_b32 v3, 31, v2")
    a("v_lshlrev_b32 v3, 10, v3")
    a("v_lshrrev_b32 v4, 5, v2")
    a("v_lshlrev_b32 v4, 4, v4")
    a("v_add3_u32 v3, v3, v4, s37")
    a("s_and_b32 s38, s3, 1")
    a("s_mul_i32 s38, s38, 448")
    a("s_mul_i32 s39, s35, 224")
    a("s_movk_i32 s40, 3584")
    for i in range(7):
        a(f"s_add_u32 s41, s38, {i*64}")
        a("v_add_u32 v4, s41, v2")
        a("v_mul_u32_u24 v5, 4682, v4")
        a("v_lshrrev_b32 v5, 16, v5")
        a("v_mul_u32_u24 v6, 14, v5")
        a("v_sub_u32 v6, v4, v6")
        a("v_lshlrev_b32 v6, 4, v6")
        a("v_mul_u32_u24 v5, s40, v5")
        a(f"v_add3_u32 v{8+i}, v5, v6, s39")
    a("v_lshrrev_b32 v4, 4, v2")
    a("v_and_b32 v5, 1, v4")
    a(f"v_mul_u32_u24 v5, {UPOFF}, v5")
    a("v_lshrrev_b32 v4, 1, v4")
    a("v_lshlrev_b32 v4, 3, v4")
    a("v_bfe_u32 v6, v2, 2, 2")
    a("v_add_u32 v4, v4, v6")
    a("v_mul_u32_u24 v4, 224, v4")
    a("v_and_b32 v6, 3, v2")
    a("v_lshlrev_b32 v6, 3, v6")
    a("v_add3_u32 v16, v4, v5, v6")
    for s in range(1, NSLOT):
        a(f"v_add_u32 v{16+s}, {s*SLOT}, v16")
    a("v_lshlrev_b32 v21, 4, v2")
    a("s_lshr_b32 s42, s3, 1")
    a(f"s_mul_i32 s42, s42, {UPOFF}")
    a("s_and_b32 s43, s3, 1")
    a("s_mul_i32 s43, s43, 7168")
    a("s_add_u32 s42, s42, s43")
    a("s_mul_i32 s44, s36, 112")
    a("s_mul_i32 s45, s35, 7")
    a("s_add_u32 s44, s44, s45")
    a("s_lshl_b32 s44, s44, 10")
    a("s_add_u32 s45, s44, 4096")
    a("s_waitcnt lgkmcnt(0)")
    a.stamp()
    srd(a, 20, 4, 5, M * D * 2)
    a("s_cmp_lt_u32 s3, 2")
    a("s_cselect_b32 s24, s6, s8")
    a("s_cselect_b32 s25, s7, s9")
    a(f"s_mov_b32 s26, {D*F*2}")
    a("s_mov_b32 s27, 0x00020000")
    srd(a, 28, 16, 17, H_BYTES)

    def dma(c):
        slot = c % NSLOT
        a(f"s_mov_b32 s46, {c*64*3584}")
        for i in range(7):
            a(f"s_add_u32 m0, s42, {slot*SLOT + i*1024}")
            a("s_nop 0")
            a.vmem(f"buffer_load_dwordx4 v{8+i}, s[24:27], s46 offen lds", ("w", c))

    def xload(S):
        a.vmem(f"buffer_load_dwordx4 a[{4*S}:{4*S+3}], v3, s[20:23], 0 offen offset:{32*S}", ("x", S // 4))

    for c in range(NSLOT):
        dma(c)
        for S in range(4 * c, 4 * c + 4):
            xload(S)
    for S in range(20, 32):
        xload(S)

    ACC = 128
    WF = 64

    def wf(S, t):
        b = WF + (S % 2) * 28 + t * 4
        return b

    def reads(S, t):
        c, s = S // 4, S % 4
        vb = 16 + (c % NSLOT)
        b = wf(S, t)
        for j in range(2):
            off = (16 * s + 4 * j) * 224 + 32 * t
            a(f"ds_read_b64_tr_b16 v[{b+2*j}:{b+2*j+1}], v{vb} offset:{off}")

    def top(c):
        a.wait_vm(lambda t: t[1] <= c and t[0] in ("w", "x"))
        a("s_barrier")
        a.stamp()
        if c >= 2 and c + 3 <= 7:
            dma(c + 3)

    a.stamp()
    top(0)
    for t in range(7):
        reads(0, t)
    for S in range(32):
        if (S + 1) % 4 == 0 and S + 1 < 32:
            top((S + 1) // 4)
        for t in range(7):
            if S < 31:
                a("s_waitcnt lgkmcnt(12)")
            else:
                a(f"s_waitcnt lgkmcnt({12-2*t})")
            b = wf(S, t)
            acc = ACC + 16 * t
            src = "0" if S == 0 else f"v[{acc}:{acc+15}]"
            a(f"v_mfma_f32_32x32x16_bf16 v[{acc}:{acc+15}], v[{b}:{b+3}], a[{4*S}:{4*S+3}], {src}")
            if S < 31:
                reads(S + 1, t)
    a.stamp()
    a("s_nop 7")
    for t in range(7):
        acc = ACC + 16 * t
        o = 24 + (t % 2) * 4
        if t == 6:
            a("s_nop 7")
        for r in range(8):
            a(f"v_max_f32 v{acc+r}, 0, v{acc+r}")
        for r in range(8):
            a(f"v_mul_f32 v{acc+r}, v{acc+r}, v{acc+8+r}")
        for q in range(4):
            a(f"v_cvt_pk_bf16_f32 v{o+q}, v{acc+2*q}, v{acc+2*q+1}")
        so = "s44" if t < 4 else "s45"
        a(f"buffer_store_dwordx4 v[{o}:{o+3}], v21, s[28:31], {so} offen offset:{(t%4)*1024}")
    a.stamp()
    a.stamp_flush(128<<20, 16)
    a.label("L_p1_end")
    a("s_endpgm")
    return NSLOT * SLOT


def gen_p2(a):
    a.vm = []
    RING = 16
    AHEAD = 15
    WREG = 32768
    a.label("glu_p2_kernel")
    a("s_cmp_ge_u32 s2, 256")
    a("s_cbranch_scc1 L_p2_end")
    a.stamp()
    a("s_load_dwordx4 s[8:11], s[0:1], 24")
    a("s_load_dwordx2 s[16:17], s[0:1], 48")
    a("v_lshrrev_b32 v1, 6, v0")
    a("v_and_b32 v2, 63, v0")
    a("v_readfirstlane_b32 s3, v1")
    a("s_and_b32 s32, s2, 7")
    a("s_lshr_b32 s33, s2, 3")
    a("s_lshl_b32 s34, s32, 2")
    a("s_and_b32 s35, s33, 3")
    a("s_add_u32 s34, s34, s35")
    a("s_lshr_b32 s35, s33, 2")
    a("s_mul_i32 s36, s34, 224")
    a("s_mul_i32 s37, s3, 28")
    a("s_add_u32 s36, s36, s37")
    a("s_lshl_b32 s36, s36, 10")
    a("v_lshlrev_b32 v3, 4, v2")
    a("v_add_u32 v3, s36, v3")
    a(f"v_add_u32 v4, {112*1024}, v3")
    a("v_lshrrev_b32 v5, 3, v2")
    a("v_and_b32 v6, 7, v2")
    a("v_bfe_u32 v7, v2, 4, 1")
    a("v_lshlrev_b32 v7, 2, v7")
    a("v_xor_b32 v6, v6, v7")
    a("v_lshlrev_b32 v6, 4, v6")
    a("v_lshlrev_b32 v5, 10, v5")
    a("s_mul_i32 s37, s3, 448*1024")
    a("s_lshl_b32 s38, s35, 7")
    a("s_add_u32 s37, s37, s38")
    a("v_add3_u32 v8, v5, v6, s37")
    a(f"v_add_u32 v9, {8192-1024}, v8")
    a("v_lshrrev_b32 v5, 5, v2")
    a("v_lshlrev_b32 v5, 2, v5")
    a("v_bfe_u32 v6, v2, 2, 2")
    a("v_add_u32 v5, v5, v6")
    a("v_lshlrev_b32 v5, 7, v5")
    a("v_bfe_u32 v6, v2, 3, 1")
    a("v_lshlrev_b32 v6, 6, v6")
    a("v_bfe_u32 v7, v2, 4, 1")
    a("v_lshlrev_b32 v7, 5, v7")
    a("v_add3_u32 v5, v5, v6, v7")
    a("v_and_b32 v6, 3, v2")
    a("v_lshlrev_b32 v6, 3, v6")
    a("s_lshl_b32 s39, s3, 15")
    a("v_add3_u32 v10, v5, v6, s39")
    a("v_xor_b32 v11, 64, v10")
    a("s_waitcnt lgkmcnt(0)")
    a.stamp()
    srd(a, 20, 8, 9, F * D * 2)
    srd(a, 24, 10, 11, M * D * 2)
    srd(a, 28, 16, 17, H_BYTES)

    def hreg(ks, i):
        return (ks % RING) * 8 + i * 4

    def loads(ks):
        a(f"s_add_u32 m0, s39, {(ks % RING)*2048}")
        a(f"s_mov_b32 s46, {ks*16*1024}")
        a.vmem("buffer_load_dwordx4 v8, s[20:23], s46 offen lds", ("w", ks))
        a.vmem("buffer_load_dwordx4 v9, s[20:23], s46 offen offset:1024 lds", ("w", ks))
        a(f"s_mov_b32 s47, {ks*1024}")
        for i in range(2):
            r = hreg(ks, i)
            a.vmem(f"buffer_load_dwordx4 a[{r}:{r+3}], v{3+i}, s[28:31], s47 offen", ("h", ks))

    ACC = 64
    WF = 32

    def wf(ks, j):
        return WF + (ks % 2) * 8 + j * 4

    def reads(ks):
        for j in range(2):
            b = wf(ks, j)
            for e in range(2):
                a(f"ds_read_b64_tr_b16 v[{b+2*e}:{b+2*e+1}], v{10+j} offset:{(ks%RING)*2048 + e*1024}")

    for ks in range(AHEAD):
        loads(ks)
    a.stamp()
    a.wait_vm(lambda t: t[1] <= 0)
    a.stamp()
    reads(0)
    for ks in range(28):
        if ks + 1 < 28:
            a.wait_vm(lambda t: t[1] <= ks + 1)
            reads(ks + 1)
            a("s_waitcnt lgkmcnt(4)")
        else:
            a("s_waitcnt lgkmcnt(0)")
        for j in range(2):
            for i in range(2):
                acc = ACC + (j * 2 + i) * 16
                b = wf(ks, j)
                r = hreg(ks, i)
                src = "0" if ks == 0 else f"v[{acc}:{acc+15}]"
                a(f"v_mfma_f32_32x32x16_bf16 v[{acc}:{acc+15}], v[{b}:{b+3}], a[{r}:{r+3}], {src}")
        if ks + AHEAD < 28:
            loads(ks + AHEAD)
        if ks % 4 == 3:
            a.stamp()
    PITCH = 272
    a("v_and_b32 v5, 31, v2")
    a(f"v_mul_u32_u24 v5, {PITCH}, v5")
    a("v_lshrrev_b32 v6, 5, v2")
    a("v_lshlrev_b32 v6, 4, v6")
    a("v_add3_u32 v12, v5, v6, s39")
    a("v_lshrrev_b32 v5, 3, v0")
    a(f"v_mul_u32_u24 v6, {PITCH}, v5")
    a("v_and_b32 v7, 7, v0")
    a("v_lshlrev_b32 v13, 5, v7")
    a("v_add_u32 v13, v13, v6")
    a("s_lshl_b32 s40, s34, 16")
    a("s_add_u32 s40, s40, s38")
    a("v_lshlrev_b32 v5, 10, v5")
    a("v_lshlrev_b32 v7, 4, v7")
    a("v_add3_u32 v14, v5, v7, s40")
    a("s_nop 7")
    a("s_nop 3")
    for j in range(2):
        for i in range(2):
            acc = ACC + (j * 2 + i) * 16
            for q in range(4):
                off = 32 * i * PITCH + (32 * j + 8 * q) * 4
                a(f"ds_write_b128 v12, v[{acc+4*q}:{acc+4*q+3}] offset:{off}")
    a("s_waitcnt lgkmcnt(0)")
    a("s_barrier")
    a.stamp()
    a(f"v_add_u32 v15, {2*WREG}, v13")
    for half in range(2):
        for w in range(4):
            base = 13 if w < 2 else 15
            off = (w % 2) * WREG + half * 32 * PITCH
            d = ACC + half * 32 + w * 8
            a(f"ds_read_b128 v[{d}:{d+3}], v{base} offset:{off}")
            a(f"ds_read_b128 v[{d+4}:{d+7}], v{base} offset:{off+16}")
    for half in range(2):
        a(f"s_waitcnt lgkmcnt({8 if half == 0 else 0})")
        d = ACC + half * 32
        for e in range(8):
            a(f"v_add_f32 v{d+e}, v{d+e}, v{d+8+e}")
            a(f"v_add_f32 v{d+16+e}, v{d+16+e}, v{d+24+e}")
        for e in range(8):
            a(f"v_add_f32 v{d+e}, v{d+e}, v{d+16+e}")
        o = 16 + half * 4
        for q in range(4):
            a(f"v_cvt_pk_bf16_f32 v{o+q}, v{d+2*q}, v{d+2*q+1}")
        a(f"s_mov_b32 s41, {half*32*1024}")
        a(f"buffer_store_dwordx4 v[{o}:{o+3}], v14, s[24:27], s41 offen")
    a.stamp()
    a.stamp_flush((128<<20) + (1<<20), 16)
    a.label("L_p2_end")
    a("s_endpgm")
    return 4 * WREG


def kd(name, nv, acc):
    return f""".amdhsa_kernel {name}
  .amdhsa_next_free_vgpr {nv}
  .amdhsa_next_free_sgpr 102
  .amdhsa_accum_offset {acc}
  .amdhsa_group_segment_fixed_size 0
  .amdhsa_kernarg_size 56
  .amdhsa_user_sgpr_count 2
  .amdhsa_user_sgpr_kernarg_segment_ptr 1
  .amdhsa_system_sgpr_workgroup_id_x 1
.end_amdhsa_kernel
"""


def main(out):
    Asm.stamps = "--stamps" in sys.argv
    a1 = Asm()
    lds1 = gen_p1(a1)
    a2 = Asm()
    lds2 = gen_p2(a2)
    s = f"""; ReGLU FFN: out = (relu(x Wg) * (x Wu)) Wd   (generated by gen/gen_v1.py)
; @launch kernel={NAME} grid=(256,1,1) block=(256,1,1) lds={lds1}
; @launch kernel=glu_p2_kernel grid=(256,1,1) block=(256,1,1) lds={lds2}
.amdgcn_target "amdgcn-amd-amdhsa--gfx950"
.text
.globl {NAME}
.p2align 8
.type {NAME},@function
{a1.text()}
.globl glu_p2_kernel
.p2align 8
.type glu_p2_kernel,@function
{a2.text()}
.section .rodata,"a"
.p2align 6
{kd(NAME, 256+128, 256)}
.p2align 6
{kd("glu_p2_kernel", 128+128, 128)}
"""
    open(out, "w").write(s)


if __name__ == "__main__":
    main(sys.argv[1] if len(sys.argv) > 1 else "standalone__glu_gated_reglu__prompt.s")
```
